```python
import torch

def _softmax(x, axis=-1):
    return torch.softmax(x, dim=axis)
def _gelu(x):
    return torch.nn.functional.gelu(x, approximate="tanh")
def _silu(x):
    return torch.nn.functional.silu(x)
def _sigmoid(x):
    return torch.sigmoid(x)
def _layernorm(x, axis=-1, eps=1e-5):
    m = x.mean(dim=axis, keepdim=True)
    v = x.var(dim=axis, keepdim=True, unbiased=False)
    return (x - m) / torch.sqrt(v + eps)
def _scatter_add(tgt, idx, src, axis=0):
    return tgt.clone().index_add_(axis, idx, src)
def _segment_sum(src, seg, n):
    out = torch.zeros((n,) + src.shape[1:], dtype=src.dtype)
    return out.index_add_(0, seg, src)
def _pad(x, pw):
    flat = tuple(v for pair in reversed(pw) for v in pair)
    return torch.nn.functional.pad(x, flat)

kernel_name = 'gated_mix__spectral_gfnet__dense_activation_gelu__prompt'

def setup_inputs():

    _w = (lambda a: (lambda t: t.to(torch.bfloat16) if t.is_floating_point() else t)(torch.as_tensor(a)))
    def _A_setup():
        B, S, D = 1, 2048, 512
        Df = D // 2 + 1
        return {
            "x": _w((lambda *s: torch.randn(*s, dtype=torch.bfloat16) * 0.05)(B, S, D)),
            "w_r": _w((lambda *s: torch.randn(*s, dtype=torch.bfloat16) * 0.8)(S, Df) * 0.02),
            "w_i": _w((lambda *s: torch.randn(*s, dtype=torch.bfloat16) * 0.8)(S, Df) * 0.02),
        }
    _A_in = _A_setup()

    def _B_setup():
        B, S, D, F = 1, 2048, 512, 1792
        return {
            "x": _w((lambda *s: torch.randn(*s, dtype=torch.bfloat16) * 0.05)(B, S, D)),
            "w1": _w((lambda *s: torch.randn(*s, dtype=torch.bfloat16) * 3.2)(D, F) * (D ** -0.5)),
            "b1": _w((lambda *s: torch.randn(*s, dtype=torch.bfloat16) * 3.2)(F) * 0.01),
            "w2": _w((lambda *s: torch.randn(*s, dtype=torch.bfloat16) * 0.05)(F, D) * (F ** -0.5)),
            "b2": _w((lambda *s: torch.randn(*s, dtype=torch.bfloat16) * 0.1)(D) * 0.01),
        }
    _B_in = _B_setup()

    return {
        "A_x": _A_in["x"],
        "A_w_r": _A_in["w_r"],
        "A_w_i": _A_in["w_i"],
        "B_x": _B_in["x"],
        "B_w1": _B_in["w1"],
        "B_b1": _B_in["b1"],
        "B_w2": _B_in["w2"],
        "B_b2": _B_in["b2"],
        "gate_w": _w((lambda *s: torch.randn(*s, dtype=torch.bfloat16) * 0.05)(512) * 16.0),
    }

def reference(A_x, A_w_r, A_w_i, B_x, B_w1, B_b1, B_w2, B_b2, gate_w):
    def _A_ref(x, w_r, w_i):
        B, S, D = x.shape
        X = (lambda x, axes=(-2,-1): torch.fft.rfft2(x.float(), dim=axes))(x, axes=(-2, -1))
        W = w_r + 1j * w_i
        X = X * W
        y = (lambda x, s, axes=(-2,-1): torch.fft.irfft2(x, s=s, dim=axes).to(torch.bfloat16))(X, (S, D), axes=(-2, -1))
        return y

    def _B_ref(x, w1, b1, w2, b2):
        h = torch.einsum("bsd,df->bsf", x, w1) + b1
        h = _gelu(h)
        return torch.einsum("bsf,fd->bsd", h, w2) + b2

    x = A_x
    g = _sigmoid((x * gate_w).sum(-1, keepdims=True))
    a = _A_ref(x, A_w_r, A_w_i)
    b = _B_ref(x, B_w1, B_b1, B_w2, B_b2)
    return g * a + (1 - g) * b
```

```python
import re

REG = re.compile(r"(?<![\w.])([vas])(?:\[(\d+):(\d+)\]|(\d+))(?![\w])")
TRANS = ("v_exp_f32", "v_log_f32", "v_rcp_f32", "v_rsq_f32", "v_sqrt_f32", "v_sin_f32", "v_cos_f32")


def regs_of(op):
    out = set()
    op = op.strip()
    if op in ("vcc", "vcc_lo", "vcc_hi"):
        return {("s", 106), ("s", 107)}
    if op == "exec":
        return {("s", 126), ("s", 127)}
    if op == "m0":
        return {("s", 124)}
    for m in REG.finditer(op):
        k = m.group(1)
        if m.group(4) is not None:
            out.add((k, int(m.group(4))))
        else:
            out.update((k, i) for i in range(int(m.group(2)), int(m.group(3)) + 1))
    return out


def split_ops(rest):
    ops, depth, cur = [], 0, ""
    for ch in rest:
        if ch == "[":
            depth += 1
        if ch == "]":
            depth -= 1
        if ch == "," and depth == 0:
            ops.append(cur.strip())
            cur = ""
        else:
            cur += ch
    if cur.strip():
        ops.append(cur.strip())
    return ops


class Ins:
    __slots__ = ("text", "mn", "kind", "w", "r", "a", "b", "c", "states", "data", "dpp", "passes")

    def __init__(self, text):
        self.text = text
        t = text.split(";")[0].strip()
        parts = t.split(None, 1)
        self.mn = mn = parts[0]
        rest = parts[1] if len(parts) > 1 else ""
        ops = split_ops(rest)
        if ops:
            last = ops[-1].split()
            if last:
                ops[-1] = last[0] if not last[0].startswith("hwreg") else ops[-1]
        self.w, self.r = set(), set()
        self.a = self.b = self.c = set()
        self.data = set()
        self.states = 1
        self.dpp = "_dpp" in mn or "row_" in rest or "quad_perm" in rest
        self.passes = 0
        R = [regs_of(o) for o in ops]
        if mn == "s_nop":
            self.kind = "nop"
            self.states = int(ops[0], 0) + 1
        elif mn.startswith("v_mfma"):
            self.kind = "mfma"
            self.passes = 8 if "32x32" in mn else 4
            self.w = R[0]
            self.a, self.b, self.c = R[1], R[2], R[3]
            self.r = R[1] | R[2] | R[3]
        elif mn.startswith("v_"):
            self.kind = "trans" if mn.replace("_e32", "").replace("_e64", "") in TRANS else "valu"
            if "permlane" in mn:
                self.kind = "perm"
                self.w = R[0] | R[1]
                self.r = R[0] | R[1]
            else:
                self.w = set(R[0])
                for x in R[1:]:
                    self.r |= x
                if mn.startswith(("v_fmac", "v_dot2c", "v_writelane")) or self.dpp:
                    self.r |= R[0]
                if "_co_" in mn:
                    self.w |= R[1]
                if mn.startswith("v_cmpx"):
                    self.w |= regs_of("exec")
        elif mn.startswith(("buffer_", "global_")):
            self.kind = "vmem"
            islds = rest.rstrip().endswith(" lds") or " lds " in rest
            if "store" in mn or "atomic" in mn:
                for x in R:
                    self.r |= x
                if mn.startswith("buffer_"):
                    self.data = R[0]
                else:
                    self.data = R[1]
                if not (mn.endswith("x4") or mn.endswith("x3")):
                    self.data = set()
            elif mn in ("buffer_wbl2", "buffer_inv"):
                pass
            elif islds:
                for x in R:
                    self.r |= x
                self.r |= {("s", 124)}
                self.kind = "dma"
            else:
                self.w = R[0]
                for x in R[1:]:
                    self.r |= x
        elif mn.startswith("ds_"):
            self.kind = "ds"
            if "read" in mn or "permute" in mn or "swizzle" in mn:
                self.w = R[0]
                for x in R[1:]:
                    self.r |= x
            else:
                for x in R:
                    self.r |= x
        elif mn.startswith("s_"):
            self.kind = "salu"
            if mn.startswith(("s_cmp", "s_waitcnt", "s_barrier", "s_cbranch", "s_branch", "s_endpgm", "s_sleep",
                              "s_setprio")):
                for x in R:
                    self.r |= x
            elif R:
                self.w = set(R[0])
                for x in R[1:]:
                    self.r |= x
                if "saveexec" in mn:
                    self.w |= regs_of("exec")
        else:
            raise ValueError(text)


def vec(s):
    return {x for x in s if x[0] in "va"}


def sca(s):
    return {x for x in s if x[0] == "s"}


VALUISH = ("valu", "trans", "perm")


def need(p, c):
    n = 0
    if p.kind in VALUISH:
        pw = vec(p.w)
        if pw:
            if c.kind == "mfma" and pw & c.r:
                n = max(n, 2)
            if c.kind == "perm" and pw & c.r:
                n = max(n, 2)
            if c.dpp and pw & c.r:
                n = max(n, 2)
            if c.mn.startswith(("v_readfirstlane", "v_readlane")) and pw & c.r:
                n = max(n, 1)
            if p.kind == "trans" and c.kind in VALUISH + ("vmem", "ds") and pw & c.r:
                n = max(n, 1)
        ps = sca(p.w)
        if ps:
            if c.kind in ("vmem", "dma") and ps & c.r:
                n = max(n, 5)
            if c.kind in VALUISH and ps & c.r:
                n = max(n, 4 if c.mn.startswith(("v_readlane", "v_writelane")) else 2)
            if c.kind == "salu" and ps & c.r:
                n = max(n, 2)
            if ("s", 126) in ps:
                if c.kind == "mfma" or c.kind == "perm":
                    n = max(n, 4)
                if c.dpp:
                    n = max(n, 5)
    if p.kind == "mfma":
        big = p.passes == 8
        if c.kind == "mfma":
            if p.w & (c.a | c.b):
                n = max(n, 12 if big else 8)
            if p.w & c.c and not (p.w == c.c and p.passes == c.passes):
                n = max(n, 10 if big else 6)
            if p.w & c.w and p.w != c.c:
                n = max(n, 10 if big else 6)
        elif c.kind in VALUISH + ("vmem", "ds", "dma"):
            if p.w & (c.r | c.w):
                n = max(n, 12 if big else 8)
            if c.kind in VALUISH and p.c & c.w:
                n = max(n, 7 if big else 3)
    if p.kind == "vmem" and p.data and (p.data & c.w):
        n = max(n, 2)
    if p.kind == "salu" and ("s", 124) in p.w and c.kind == "dma":
        n = max(n, 1)
    return n


class Em:
    def __init__(self):
        self.out = []
        self.hist = []
        self.vm = 0
        self.lg = 0
        self.vm_done = 0
        self.lg_done = 0
        self.uid = 0
        self.nops = 0

    def raw(self, s):
        self.out.append(s)

    def label(self, name):
        self.out.append(f"{name}:")

    def newlabel(self, base):
        self.uid += 1
        return f"L_{base}_{self.uid}"

    def reset_hist(self):
        self.hist = []
        self.vm = self.vm_done = self.lg = self.lg_done = 0

    def __call__(self, text):
        tok = None
        for line in text.split("\n"):
            line = line.strip()
            if not line:
                continue
            if line.startswith(";"):
                self.out.append("    " + line)
                continue
            ins = Ins(line)
            dist, pad = 0, 0
            for p in reversed(self.hist):
                if dist >= 20:
                    break
                pad = max(pad, need(p, ins) - dist)
                dist += p.states
            if pad > 0:
                nop = Ins(f"s_nop {pad-1}")
                self.out.append("    " + nop.text)
                self.hist.append(nop)
                self.nops += pad
            self.out.append("    " + line)
            self.hist.append(ins)
            self.hist = self.hist[-24:]
            if ins.kind in ("vmem", "dma") and ins.mn not in ("buffer_wbl2", "buffer_inv"):
                self.vm += 1
                tok = ("vm", self.vm)
            elif ins.kind == "ds":
                self.lg += 1
                tok = ("lg", self.lg)
        return tok

    def wait(self, *toks):
        vn = ln = None
        for t in toks:
            if t is None:
                continue
            if t[0] == "vm" and t[1] > self.vm_done:
                n = self.vm - t[1]
                vn = n if vn is None else min(vn, n)
            if t[0] == "lg" and t[1] > self.lg_done:
                n = self.lg - t[1]
                ln = n if ln is None else min(ln, n)
        parts = []
        if vn is not None:
            vn = min(vn, 63)
            parts.append(f"vmcnt({vn})")
            self.vm_done = max(self.vm_done, self.vm - vn)
        if ln is not None:
            ln = min(ln, 15)
            parts.append(f"lgkmcnt({ln})")
            self.lg_done = max(self.lg_done, self.lg - ln)
        if parts:
            self("s_waitcnt " + " ".join(parts))

    def wait_all_vm(self):
        self("s_waitcnt vmcnt(0)")
        self.vm_done = self.vm

    def wait_all_lg(self):
        self("s_waitcnt lgkmcnt(0)")
        self.lg_done = self.lg

    def last_vm(self):
        return ("vm", self.vm)

    def last_lg(self):
        return ("lg", self.lg)

    def text(self):
        return "\n".join(self.out) + "\n"


def v(i, n=1):
    return f"v{i}" if n == 1 else f"v[{i}:{i+n-1}]"


def a(i, n=1):
    return f"a{i}" if n == 1 else f"a[{i}:{i+n-1}]"


def s(i, n=1):
    return f"s{i}" if n == 1 else f"s[{i}:{i+n-1}]"
```

```python
import struct
import sys
from emit import *

NAME = "gated_mix__spectral_gfnet__dense_activation_gelu__prompt"
HB_OFF = 0
W2R_OFF = 8 << 20
Z1_OFF = 10 << 20
T_OFF = 12 << 20
G_OFF = 16 << 20
FLAG_OFF = 17 << 20
STAMP_OFF = 200 << 20
WS_BYTES = 1 << 28
LDS_BYTES = 147456

SX, SWS, SW1, SWR, SWI, SW2, SB1, SB2, SGT, SOUT, SDBG = 4, 8, 12, 16, 20, 24, 28, 32, 36, 40, 44
sWAVE, sXCD, sJ = 48, 49, 50
sRT, sCT, sSIG, sN2, sV, sODD = 51, 52, 53, 54, 55, 56
sXS, sWS_, sXL, sWL = 57, 58, 59, 60
sK1, sP = 61, 62
sGN2, sC = 63, 64
sT0 = 66
sK = 80
sC1 = 94
sSTG = 98

vL, vI, vG = 0, 1, 2
vL16 = 3
vXA, vWA, vXR, vWR = 4, 8, 12, 14
vT = 22
ACC = 56
ACCF = 112
GC, GS = 176, 192
IC, IS = 208, 216
DC, DS = 224, 240
FRAG = 0
FR, FI = 72, 88
S1C, S1S = 104, 112
P3C = 224

LDS_W2 = 131072
LDS_YX = 139264
LDS_YE = 65536
LDS_RS = 0


def fbits(x):
    return struct.unpack("<I", struct.pack("<f", x))[0]


def hexf(x):
    return f"0x{fbits(x):08x}"


def mfma(e, d, A, B, C):
    return e(f"v_mfma_f32_16x16x32_bf16 {d}, {A}, {B}, {C}")


def cvt(e, d, x, y, neg=False):
    n = "-" if neg else ""
    e(f"v_cvt_pk_bf16_f32 {v(d)}, {n}{v(x)}, {n}{v(y)}")


def setup_common(e, endlabel):
    e("s_cmp_ge_u32 s2, 256")
    e(f"s_cbranch_scc1 {endlabel}")
    for srd, off in ((SX, 0), (SW1, 32), (SWS, 88), (SW2, 48), (SB1, 40), (SGT, 64), (SWR, 8), (SWI, 16),
                     (SB2, 56), (SOUT, 72), (SDBG, 80)):
        e(f"s_load_dwordx2 {s(srd,2)}, s[0:1], {off}")
    e(f"v_lshrrev_b32 v3, 6, v0")
    e(f"v_and_b32 v0, 63, v0")
    e(f"v_readfirstlane_b32 {s(sWAVE)}, v3")
    e(f"v_and_b32 {v(vI)}, 15, v0")
    e(f"v_lshrrev_b32 {v(vG)}, 4, v0")
    e(f"v_lshlrev_b32 {v(vL16)}, 4, v0")
    e(f"s_and_b32 {s(sXCD)}, s2, 7")
    e(f"s_lshr_b32 {s(sJ)}, s2, 3")
    for srd, n in ((SX, 2097152), (SW1, 1835008), (SWS, WS_BYTES), (SW2, 1835008), (SB1, 3584), (SGT, 1024),
                   (SWR, 2048 * 514), (SWI, 2048 * 514), (SB2, 1024), (SOUT, 2097152), (SDBG, 256)):
        e(f"s_mov_b32 {s(srd+2)}, {n}")
        e(f"s_mov_b32 {s(srd+3)}, 0x00020000")


def ids_p1(e):
    t = sT0
    e(f"s_lshr_b32 {s(t)}, {s(sXCD)}, 1")
    e(f"s_lshl_b32 {s(t)}, {s(t)}, 2")
    e(f"s_lshr_b32 {s(t+1)}, {s(sJ)}, 3")
    e(f"s_add_u32 {s(sRT)}, {s(t)}, {s(t+1)}")
    e(f"s_and_b32 {s(t)}, {s(sXCD)}, 1")
    e(f"s_lshl_b32 {s(t)}, {s(t)}, 3")
    e(f"s_and_b32 {s(t+2)}, {s(sJ)}, 7")
    e(f"s_add_u32 {s(sCT)}, {s(t)}, {s(t+2)}")
    e(f"s_lshl_b32 {s(t+1)}, {s(t+1)}, 1")
    e(f"s_add_u32 {s(t+1)}, {s(t+1)}, {s(t+2)}")
    e(f"s_and_b32 {s(sSIG)}, {s(t+1)}, 7")
    e(f"s_lshr_b32 {s(t)}, {s(sWAVE)}, 1")
    e(f"s_lshl_b32 {s(sN2)}, {s(sRT)}, 1")
    e(f"s_add_u32 {s(sN2)}, {s(sN2)}, {s(t)}")
    e(f"s_and_b32 {s(sV)}, {s(sWAVE)}, 1")
    e(f"s_and_b32 {s(sODD)}, {s(sCT)}, 1")


def ids_p2(e):
    t = sT0
    e(f"s_lshl_b32 {s(t)}, {s(sXCD)}, 3")
    e(f"s_lshr_b32 {s(t+1)}, {s(sJ)}, 2")
    e(f"s_add_u32 {s(sK1)}, {s(t)}, {s(t+1)}")
    e(f"s_and_b32 {s(sP)}, {s(sJ)}, 3")


def ids_g2(e):
    t = sT0
    e(f"s_lshl_b32 {s(t)}, {s(sXCD)}, 2")
    e(f"s_lshr_b32 {s(t+1)}, {s(sJ)}, 3")
    e(f"s_add_u32 {s(sGN2)}, {s(t)}, {s(t+1)}")
    e(f"s_and_b32 {s(sC)}, {s(sJ)}, 7")
    e(f"s_mul_i32 {s(t)}, {s(sC)}, 7")
    e(f"s_lshr_b32 {s(t)}, {s(t)}, 2")
    e(f"s_lshl_b32 {s(t+1)}, {s(t+1)}, 2")
    e(f"s_add_u32 {s(t)}, {s(t)}, {s(t+1)}")
    e(f"s_cmp_ge_u32 {s(t)}, 14")
    e(f"s_cselect_b32 {s(t+1)}, 14, 0")
    e(f"s_sub_u32 {s(t)}, {s(t)}, {s(t+1)}")
    e(f"s_lshl_b32 {s(sK)}, {s(t)}, 12")
    for i in range(1, 14):
        e(f"s_add_u32 {s(sK+i)}, {s(sK+i-1)}, 4096")
        e(f"s_cmp_eq_u32 {s(sK+i)}, {14*4096}")
        e(f"s_cselect_b32 {s(sK+i)}, 0, {s(sK+i)}")


def p1_addr(e):
    t, u = vT, sT0
    e(f"s_lshl_b32 {s(u)}, {s(sV)}, 5")
    e(f"s_add_u32 {s(u)}, {s(u)}, {s(sN2)}")
    e(f"s_lshl_b32 {s(u)}, {s(u)}, 10")
    e(f"v_lshrrev_b32 {v(t)}, 3, v0")
    e(f"v_and_b32 {v(t+1)}, 7, v0")
    e(f"v_xor_b32 {v(t+1)}, {v(t+1)}, {v(vG)}")
    e(f"v_lshlrev_b32 {v(t+1)}, 4, {v(t+1)}")
    e(f"v_lshl_add_u32 {v(t)}, {v(t)}, 16, {v(t+1)}")
    e(f"v_add_u32 {v(vXA)}, {s(u)}, {v(t)}")
    e(f"v_xor_b32 {v(t)}, 64, {v(vXA)}")
    e(f"v_add_u32 {v(vXA+1)}, {8*65536-1024}, {v(t)}")
    e(f"v_add_u32 {v(vXA+2)}, {16*65536-2048}, {v(vXA)}")
    e(f"v_add_u32 {v(vXA+3)}, {16*65536-2048}, {v(vXA+1)}")
    e(f"s_mul_i32 {s(u)}, {s(sCT)}, 224")
    e(f"s_and_b32 {s(u)}, {s(u)}, 0xffffffc0")
    e(f"s_mul_i32 {s(u+1)}, {s(sWAVE)}, {16*3584}")
    e(f"s_add_u32 {s(u)}, {s(u)}, {s(u+1)}")
    e(f"v_mul_u32_u24 {v(t)}, 3584, {v(vG)}")
    e(f"v_add_u32 {v(t)}, {s(u)}, {v(t)}")
    e(f"v_lshlrev_b32 {v(t+1)}, 1, {v(vG)}")
    e(f"v_xor_b32 {v(t+1)}, {v(t+1)}, {v(vI)}")
    e(f"v_lshlrev_b32 {v(t+1)}, 4, {v(t+1)}")
    e(f"v_xor_b32 {v(t+2)}, 128, {v(t+1)}")
    e(f"v_add_u32 {v(vWA)}, {v(t)}, {v(t+1)}")
    e(f"v_add_u32 {v(vWA+1)}, {4*3584-1024}, {v(vWA)}")
    e(f"v_add_u32 {v(t)}, {8*3584-2048}, {v(t)}")
    e(f"v_add_u32 {v(vWA+2)}, {v(t)}, {v(t+2)}")
    e(f"v_add_u32 {v(vWA+3)}, {4*3584-1024}, {v(vWA+2)}")
    e(f"s_lshl_b32 {s(sXL)}, {s(sWAVE)}, 12")
    e(f"s_add_u32 {s(sWL)}, {s(sXL)}, 16384")
    e(f"s_mov_b32 {s(sSTG)}, {s(sSIG)}")


def p1_raddr(e):
    t, u = vT, sT0
    e(f"v_lshrrev_b32 {v(t)}, 1, {v(vI)}")
    e(f"v_xor_b32 {v(t)}, {v(t)}, {v(vG)}")
    e(f"v_lshlrev_b32 {v(t)}, 4, {v(t)}")
    e(f"v_lshl_add_u32 {v(t)}, {v(vI)}, 7, {v(t)}")
    e(f"v_add_u32 {v(vXR)}, {s(sXL)}, {v(t)}")
    e(f"v_xor_b32 {v(vXR+1)}, 64, {v(vXR)}")
    e(f"v_bfe_u32 {v(t)}, v0, 2, 2")
    e(f"v_and_b32 {v(t+1)}, 1, {v(vG)}")
    e(f"v_lshl_or_b32 {v(t+1)}, {v(t+1)}, 2, {v(t)}")
    e(f"v_lshl_add_u32 {v(t)}, {v(vG)}, 3, {v(t)}")
    e(f"v_lshlrev_b32 {v(t)}, 8, {v(t)}")
    e(f"v_and_b32 {v(t+2)}, 3, v0")
    e(f"v_lshl_add_u32 {v(t)}, {v(t+2)}, 3, {v(t)}")
    e(f"v_add_u32 {v(t)}, 16384, {v(t)}")
    e(f"s_lshl_b32 {s(u)}, {s(sODD)}, 1")
    for tau in range(7):
        if tau == 6:
            e(f"s_cmp_eq_u32 {s(sODD)}, 0")
            e(f"s_cselect_b32 {s(u)}, 6, 1")
        e(f"v_xor_b32 {v(t+2)}, {s(u)}, {v(t+1)}")
        e(f"v_lshl_add_u32 {v(vWR+tau)}, {v(t+2)}, 5, {v(t)}")
        if tau < 5:
            e(f"s_add_u32 {s(u)}, {s(u)}, 1")


def p1_dma(e, i, flags=""):
    slot = (i & 3) * 32768
    e(f"s_lshl_b32 {s(sXS)}, {s(sSTG)}, 7")
    e(f"s_mul_i32 {s(sWS_)}, {s(sSTG)}, {64*3584}")
    e(f"s_add_u32 m0, {s(sXL)}, {slot}")
    for j in range(4):
        e(f"buffer_load_dwordx4 {v(vXA+j)}, {s(SX,4)}, {s(sXS)} offen offset:{1024*j} {flags} lds")
    e(f"s_add_u32 m0, {s(sWL)}, {slot}")
    e(f"s_add_u32 {s(sSTG)}, {s(sSTG)}, 1")
    for j in range(4):
        tok = e(f"buffer_load_dwordx4 {v(vWA+j)}, {s(SW1,4)}, {s(sWS_)} offen offset:{1024*j} {flags} lds")
    e(f"s_and_b32 {s(sSTG)}, {s(sSTG)}, 7")
    return tok


def bias_load(e):
    u = sT0
    e(f"s_mul_i32 {s(u)}, {s(sCT)}, 224")
    e(f"s_lshl_b32 {s(u+1)}, {s(sODD)}, 5")
    e(f"s_add_u32 {s(u+1)}, {s(u)}, {s(u+1)}")
    e(f"s_cmp_eq_u32 {s(sODD)}, 0")
    e(f"s_cselect_b32 {s(u+2)}, 192, 0")
    e(f"s_add_u32 {s(u+2)}, {s(u)}, {s(u+2)}")
    e(f"v_lshlrev_b32 {v(vT)}, 3, {v(vG)}")
    for tau in range(7):
        so, off = (u + 1, 32 * tau) if tau < 6 else (u + 2, 0)
        tok = e(f"buffer_load_dwordx2 {v(ACC+8*tau+4,2)}, {v(vT)}, {s(SB1,4)}, {s(so)} offen offset:{off}")
    return tok


def bias_unpack(e):
    for tau in range(7):
        d, x = ACC + 8 * tau, ACC + 8 * tau + 4
        e(f"v_lshlrev_b32 {v(d)}, 16, {v(x)}")
        e(f"v_and_b32 {v(d+1)}, 0xffff0000, {v(x)}")
        e(f"v_lshlrev_b32 {v(d+2)}, 16, {v(x+1)}")
        e(f"v_and_b32 {v(d+3)}, 0xffff0000, {v(x+1)}")


def trig_run(e, ang, step, n, sink, t, first=True):
    for k in range(n // 2):
        c0, c1, s0, s1 = t, t + 1, t + 2, t + 3
        if not first or k > 0:
            e(f"v_add_f32 {v(ang)}, {v(ang)}, {v(step)}")
        e(f"v_cos_f32 {v(c0)}, {v(ang)}")
        e(f"v_sin_f32 {v(s0)}, {v(ang)}")
        e(f"v_add_f32 {v(ang)}, {v(ang)}, {v(step)}")
        e(f"v_cos_f32 {v(c1)}, {v(ang)}")
        e(f"v_sin_f32 {v(s1)}, {v(ang)}")
        sink(k, c0, c1, s0, s1)


def const_F(e):
    t, u = vT, sT0
    base, ang, big, ny = t, t + 1, t + 2, t + 3
    e(f"s_and_b32 {s(u)}, {s(sCT)}, 3")
    e(f"s_lshr_b32 {s(u+1)}, {s(sCT)}, 2")
    e(f"s_lshl_b32 {s(u+1)}, {s(u+1)}, 6")
    e(f"s_add_u32 {s(u)}, {s(u)}, {s(u+1)}")
    e(f"v_lshl_add_u32 {v(base)}, {v(vI)}, 2, {s(u)}")
    e(f"v_cmp_eq_u32 vcc, 0, {v(base)}")
    e(f"v_cvt_f32_u32 {v(base)}, {v(base)}")
    e(f"v_mul_f32 {v(base)}, {hexf(1/512)}, {v(base)}")
    e(f"s_lshl_b32 {s(u)}, {s(sSIG)}, 6")
    e(f"v_lshl_add_u32 {v(ang)}, {v(vG)}, 3, {s(u)}")
    e(f"v_cvt_f32_u32 {v(ang)}, {v(ang)}")
    e(f"v_mul_f32 {v(ang)}, {v(ang)}, {v(base)}")
    e(f"v_fract_f32 {v(ang)}, {v(ang)}")
    e(f"v_mul_f32 {v(big)}, {hexf(24.0)}, {v(base)}")
    e(f"v_mov_b32 {v(ny)}, 0xbf803f80")
    for st in range(4):
        def sink(k, c0, c1, s0, s1):
            cvt(e, c0, c0, c1)
            cvt(e, s0, s0, s1, neg=True)
            e(f"v_accvgpr_write_b32 {a(FR+4*st+k)}, {v(c0)}")
            e(f"v_cndmask_b32 {v(s0)}, {v(s0)}, {v(ny)}, vcc")
            e(f"v_accvgpr_write_b32 {a(FI+4*st+k)}, {v(s0)}")
        if st:
            e(f"v_add_f32 {v(ang)}, {v(ang)}, {v(big)}")
        trig_run(e, ang, base, 8, sink, t + 4, first=(st == 0))


def lane_parity_mask(e, d):
    e(f"v_and_b32 {v(d)}, 1, {v(vI)}")
    e(f"v_mul_u32_u24 {v(d)}, 0x8000, {v(d)}")
    e(f"v_lshl_or_b32 {v(d)}, {v(d)}, 16, {v(d)}")


def const_S1(e):
    t = vT
    base, ang, mask = t, t + 1, t + 2
    e(f"v_cvt_f32_u32 {v(base)}, {v(vI)}")
    e(f"v_mul_f32 {v(base)}, {hexf(1/32)}, {v(base)}")
    e(f"v_lshlrev_b32 {v(ang)}, 2, {v(vG)}")
    e(f"v_cvt_f32_u32 {v(ang)}, {v(ang)}")
    e(f"v_mul_f32 {v(ang)}, {v(ang)}, {v(base)}")
    lane_parity_mask(e, mask)

    def sink(k, c0, c1, s0, s1):
        cvt(e, c0, c0, c1)
        cvt(e, s0, s0, s1)
        for reg, dst in ((c0, S1C), (s0, S1S)):
            e(f"v_accvgpr_write_b32 {a(dst+k)}, {v(reg)}")
            e(f"v_xor_b32 {v(c1)}, 0x80000000, {v(reg)}")
            e(f"v_xor_b32 {v(reg)}, {v(mask)}, {v(reg)}")
            e(f"v_accvgpr_write_b32 {a(dst+4+k)}, {v(c1)}")
            e(f"v_xor_b32 {v(c1)}, 0x80000000, {v(reg)}")
            e(f"v_accvgpr_write_b32 {a(dst+2+k)}, {v(reg)}")
            e(f"v_accvgpr_write_b32 {a(dst+6+k)}, {v(c1)}")
    trig_run(e, ang, base, 4, sink, t + 4)


def const_G(e):
    t, u = vT, sT0
    base, ang, big = t, t + 1, t + 2
    e(f"v_lshl_add_u32 {v(base)}, {v(vI)}, 6, {s(sK1)}")
    e(f"v_cvt_f32_u32 {v(base)}, {v(base)}")
    e(f"v_mul_f32 {v(base)}, {hexf(1/2048)}, {v(base)}")
    e(f"v_lshlrev_b32 {v(ang)}, 3, {v(vG)}")
    e(f"v_cvt_f32_u32 {v(ang)}, {v(ang)}")
    e(f"v_mul_f32 {v(ang)}, {v(ang)}, {v(base)}")
    e(f"v_mul_f32 {v(big)}, {hexf(24.0)}, {v(base)}")
    for z in range(2):
        def sink(k, c0, c1, s0, s1):
            cvt(e, GC + 4 * z + k, c0, c1)
            cvt(e, GS + 4 * z + k, s0, s1)
            e(f"v_xor_b32 {v(GC+8+4*z+k)}, 0x80000000, {v(GC+4*z+k)}")
            e(f"v_xor_b32 {v(GS+8+4*z+k)}, 0x80000000, {v(GS+4*z+k)}")
        if z:
            e(f"v_add_f32 {v(ang)}, {v(ang)}, {v(big)}")
        trig_run(e, ang, base, 8, sink, t + 4, first=(z == 0))


def const_I(e):
    t, u = vT, sT0
    base, ang, mask, ks = t, t + 1, t + 2, t + 3
    lane_parity_mask(e, mask)
    e(f"v_lshl_add_u32 {v(ks)}, {v(vG)}, 8, {s(sK1)}")
    e(f"v_cvt_f32_u32 {v(ks)}, {v(ks)}")
    e(f"v_mul_f32 {v(ks)}, {hexf(1/64)}, {v(ks)}")
    for nt in range(2):
        e(f"v_add_u32 {v(base)}, {16*nt}, {v(vI)}")
        e(f"v_cvt_f32_u32 {v(base)}, {v(base)}")
        e(f"v_mul_f32 {v(base)}, {hexf(1/32)}, {v(base)}")
        e(f"v_mul_f32 {v(ang)}, {v(ks)}, {v(base)}")

        def sink(k, c0, c1, s0, s1):
            cvt(e, IC + 4 * nt + k, c0, c1)
            cvt(e, IS + 4 * nt + k, s0, s1)
            e(f"v_xor_b32 {v(IC+4*nt+2+k)}, {v(mask)}, {v(IC+4*nt+k)}")
            e(f"v_xor_b32 {v(IS+4*nt+2+k)}, {v(mask)}, {v(IS+4*nt+k)}")
        trig_run(e, ang, base, 4, sink, t + 4)


def const_D(e):
    t, u = vT, sT0
    base, ang, big, kd, half, sg = t, t + 1, t + 2, t + 3, t + 8, t + 9
    e(f"v_lshl_add_u32 {v(kd)}, {v(vG)}, 4, {s(sP)}")
    e(f"v_cmp_eq_u32 vcc, 0, {v(kd)}")
    e(f"v_cvt_f32_u32 {v(kd)}, {v(kd)}")
    e(f"v_mul_f32 {v(kd)}, 0x3e800000, {v(kd)}")
    e(f"v_mov_b32 {v(half)}, 0.5")
    e(f"v_and_b32 {v(sg)}, 1, {v(vI)}")
    e(f"v_lshlrev_b32 {v(sg)}, 31, {v(sg)}")
    e(f"v_xor_b32 {v(sg)}, 0xbf000000, {v(sg)}")
    e(f"s_lshl_b32 {s(u)}, {s(sWAVE)}, 5")
    for et in range(2):
        e(f"v_add_u32 {v(base)}, {s(u)}, {v(vI)}")
        e(f"v_cvt_f32_u32 {v(base)}, {v(base)}")
        e(f"v_mul_f32 {v(base)}, {hexf(1/128)}, {v(base)}")
        e(f"v_mul_f32 {v(ang)}, {v(kd)}, {v(base)}")
        e(f"v_mul_f32 {v(big)}, {hexf(12.0)}, {v(base)}")
        for q in range(4):
            def sink(k, c0, c1, s0, s1):
                if q == 0 and k == 0:
                    e(f"v_cndmask_b32 {v(c0)}, {v(c0)}, {v(half)}, vcc")
                    e(f"v_cndmask_b32 {v(s0)}, {v(s0)}, {v(sg)}, vcc")
                cvt(e, DC + 8 * et + 2 * q + k, c0, c1)
                cvt(e, DS + 8 * et + 2 * q + k, s0, s1)
            if q:
                e(f"v_add_f32 {v(ang)}, {v(ang)}, {v(big)}")
            trig_run(e, ang, base, 4, sink, t + 4, first=(q == 0))
        if et == 0:
            e(f"s_add_u32 {s(u)}, {s(u)}, 16")


def const_P3(e):
    t = vT
    base, ang, g8 = t, t + 1, t + 2
    e(f"v_lshlrev_b32 {v(g8)}, 3, {v(vG)}")
    e(f"v_cvt_f32_u32 {v(g8)}, {v(g8)}")
    for vv in range(2):
        e(f"v_lshl_add_u32 {v(base)}, {v(vI)}, 1, {vv}")
        e(f"v_cvt_f32_u32 {v(base)}, {v(base)}")
        e(f"v_mul_f32 {v(base)}, {hexf(1/64)}, {v(base)}")
        e(f"v_mul_f32 {v(ang)}, {v(g8)}, {v(base)}")

        def sink(k, c0, c1, s0, s1):
            cvt(e, c0, c0, c1)
            cvt(e, s0, s0, s1)
            e(f"v_accvgpr_write_b32 {a(P3C+16*vv+k)}, {v(c0)}")
            e(f"v_accvgpr_write_b32 {a(P3C+16*vv+4+k)}, {v(s0)}")
            e(f"v_xor_b32 {v(c0)}, 0x80000000, {v(c0)}")
            e(f"v_xor_b32 {v(s0)}, 0x80000000, {v(s0)}")
            e(f"v_accvgpr_write_b32 {a(P3C+16*vv+8+k)}, {v(c0)}")
            e(f"v_accvgpr_write_b32 {a(P3C+16*vv+12+k)}, {v(s0)}")
        trig_run(e, ang, base, 8, sink, t + 4)


def w2r_load(e):
    t, u = vT + 10, sT0 + 8
    e(f"s_lshr_b32 {s(u)}, s2, 2")
    e(f"s_lshl_b32 {s(u)}, {s(u)}, 15")
    e(f"s_and_b32 {s(u+1)}, s2, 3")
    e(f"s_lshl_b32 {s(u+1)}, {s(u+1)}, 8")
    e(f"s_add_u32 {s(u)}, {s(u)}, {s(u+1)}")
    e(f"s_lshl_b32 {s(u+1)}, {s(sWAVE)}, 6")
    e(f"s_add_u32 {s(u)}, {s(u)}, {s(u+1)}")
    e(f"s_add_u32 {s(u+1)}, {s(u)}, {16384-1024}")
    e(f"v_lshrrev_b32 {v(t)}, 2, v0")
    e(f"v_and_b32 {v(t+1)}, 3, v0")
    e(f"v_lshlrev_b32 {v(t+1)}, 4, {v(t+1)}")
    e(f"v_lshl_add_u32 {v(t)}, {v(t)}, 10, {v(t+1)}")
    e(f"s_lshl_b32 {s(u+2)}, {s(sWAVE)}, 11")
    e(f"s_add_u32 m0, {s(u+2)}, {LDS_W2}")
    e(f"buffer_load_dwordx4 {v(t)}, {s(SW2,4)}, {s(u)} offen nt lds")
    return e(f"buffer_load_dwordx4 {v(t)}, {s(SW2,4)}, {s(u+1)} offen offset:1024 nt lds")


def w2r_store(e, tok, st):
    t, u = vT + 10, sT0 + 8
    skip = e.newlabel("w2skip")
    e(f"s_lshr_b32 {s(u)}, s2, 2")
    e(f"s_mul_i32 {s(u+1)}, {s(u)}, 37")
    e(f"s_lshr_b32 {s(u+1)}, {s(u+1)}, 8")
    e(f"s_mul_i32 {s(u+1)}, {s(u+1)}, 7")
    e(f"s_sub_u32 {s(u+1)}, {s(u)}, {s(u+1)}")
    e(f"v_lshlrev_b32 {v(t)}, 2, {v(vG)}")
    e(f"v_and_b32 {v(t+1)}, 1, {v(vG)}")
    e(f"v_lshlrev_b32 {v(t+1)}, 2, {v(t+1)}")
    e(f"v_and_b32 {v(t+2)}, 2, {v(vG)}")
    e(f"v_lshl_add_u32 {v(t+1)}, {v(t+2)}, 3, {v(t+1)}")
    e(f"s_cmp_eq_u32 {s(u+1)}, 3")
    e(f"s_cselect_b64 vcc, -1, 0")
    e(f"s_cselect_b32 {s(u+1)}, 1, 2")
    e(f"s_lshl_b32 {s(u+1)}, {s(u+1)}, 9")
    e(f"v_cndmask_b32 {v(t)}, {v(t)}, {v(t+1)}, vcc")
    e(f"v_bfe_u32 {v(t+1)}, v0, 2, 2")
    e(f"v_add_u32 {v(t)}, {v(t)}, {v(t+1)}")
    e(f"v_and_b32 {v(t+1)}, 3, v0")
    e(f"v_lshlrev_b32 {v(t+1)}, 3, {v(t+1)}")
    e(f"v_lshl_add_u32 {v(t)}, {v(t)}, 6, {v(t+1)}")
    e(f"s_lshl_b32 {s(u+2)}, {s(sWAVE)}, 11")
    e(f"s_add_u32 {s(u+2)}, {s(u+2)}, {LDS_W2}")
    e(f"v_add_u32 {v(t)}, {s(u+2)}, {v(t)}")
    e(f"v_add_u32 {v(t+1)}, {s(u+1)}, {v(t)}")
    e(f"s_mul_i32 {s(u+1)}, {s(sWAVE)}, {2*56*4096}")
    e(f"s_lshl_b32 {s(u+2)}, s2, 10")
    e(f"s_add_u32 {s(u+1)}, {s(u+1)}, {s(u+2)}")
    e(f"s_add_u32 {s(u+1)}, {s(u+1)}, {W2R_OFF}")
    e(f"s_add_u32 {s(u+2)}, {s(u+1)}, {56*4096}")
    e.wait(tok)
    d = t + 2
    d += d & 1
    for c2 in range(2):
        e(f"ds_read_b64_tr_b16 {v(d+4*c2,2)}, {v(t)} offset:{32*c2}")
        lk = e(f"ds_read_b64_tr_b16 {v(d+4*c2+2,2)}, {v(t+1)} offset:{32*c2}")
    e(f"s_cmp_ge_u32 s2, 224")
    e(f"s_cselect_b32 {s(u+1)}, {WS_BYTES}, {s(u+1)}")
    e(f"s_cselect_b32 {s(u+2)}, {WS_BYTES}, {s(u+2)}")
    e.wait(lk)
    e(f"buffer_store_dwordx4 {v(d,4)}, {v(vL16)}, {s(SWS,4)}, {s(u+1)} offen {st}")
    return e(f"buffer_store_dwordx4 {v(d+4,4)}, {v(vL16)}, {s(SWS,4)}, {s(u+2)} offen {st}")


def gate_load(e):
    t, u = vT + 22, sT0 + 11
    e(f"s_and_b32 {s(u)}, {s(sCT)}, 3")
    e(f"s_lshl_b32 {s(u)}, {s(u)}, 2")
    e(f"s_add_u32 {s(u)}, {s(u)}, {s(sWAVE)}")
    e(f"s_lshl_b32 {s(u)}, {s(u)}, 1")
    e(f"s_lshr_b32 {s(u+1)}, {s(sCT)}, 3")
    e(f"s_lshl_b32 {s(u+2)}, {s(sRT)}, 1")
    e(f"s_add_u32 {s(u+1)}, {s(u+1)}, {s(u+2)}")
    e(f"s_bfe_u32 {s(u+2)}, {s(sCT)}, 0x10002")
    e(f"s_lshl_b32 {s(u+2)}, {s(u+2)}, 5")
    e(f"s_lshl_b32 {s(99)}, {s(u+1)}, 6")
    e(f"s_add_u32 {s(99)}, {s(99)}, {s(u+2)}")
    e(f"s_add_u32 {s(99)}, {s(99)}, {s(u)}")
    e(f"s_lshl_b32 {s(99)}, {s(99)}, 2")
    e(f"s_add_u32 {s(99)}, {s(99)}, {G_OFF}")
    e(f"s_lshl_b32 {s(u)}, {s(u)}, 6")
    e(f"s_add_u32 {s(u)}, {s(u)}, {s(u+1)}")
    e(f"s_add_u32 {s(u)}, {s(u)}, {s(u+2)}")
    e(f"s_lshl_b32 {s(u)}, {s(u)}, 10")
    e(f"s_add_u32 {s(u+1)}, {s(u)}, 65536")
    e(f"buffer_load_dwordx4 {v(t,4)}, {v(vL16)}, {s(SGT,4)}, 0 offen")
    e(f"buffer_load_dwordx4 {v(t+4,4)}, {v(vL16)}, {s(SX,4)}, {s(u)} offen")
    return e(f"buffer_load_dwordx4 {v(t+8,4)}, {v(vL16)}, {s(SX,4)}, {s(u+1)} offen")


def gate_finish(e, tok, st):
    t = vT + 22
    z = vT
    e(f"v_mov_b32 {v(z)}, 0")
    e(f"v_mov_b32 {v(z+1)}, 0")
    e.wait(tok)
    for k in range(4):
        e(f"v_dot2c_f32_bf16 {v(z)}, {v(t+k)}, {v(t+4+k)}")
        e(f"v_dot2c_f32_bf16 {v(z+1)}, {v(t+k)}, {v(t+8+k)}")
    e("s_nop 2")
    for ctl in ("row_shr:1 row_mask:0xf", "row_shr:2 row_mask:0xf", "row_shr:4 row_mask:0xf",
                "row_shr:8 row_mask:0xf", "row_bcast:15 row_mask:0xa", "row_bcast:31 row_mask:0xc"):
        for q in range(2):
            e(f"v_add_f32_dpp {v(z+q)}, {v(z+q)}, {v(z+q)} {ctl} bank_mask:0xf")
    cvt(e, z, z, z + 1)
    e(f"v_and_b32 {v(z+1)}, 0xffff0000, {v(z)}")
    e(f"v_lshlrev_b32 {v(z)}, 16, {v(z)}")
    for q in range(2):
        e(f"v_mul_f32 {v(z+q)}, {hexf(-1.4426950408889634)}, {v(z+q)}")
    for q in range(2):
        e(f"v_exp_f32 {v(z+q)}, {v(z+q)}")
    for q in range(2):
        e(f"v_add_f32 {v(z+q)}, 1.0, {v(z+q)}")
    for q in range(2):
        e(f"v_rcp_f32 {v(z+q)}, {v(z+q)}")
    cvt(e, z, z, z + 1)
    e(f"v_and_b32 {v(z+1)}, 0xffff0000, {v(z)}")
    e(f"v_lshlrev_b32 {v(z)}, 16, {v(z)}")
    e(f"v_cmp_eq_u32 vcc, 63, v0")
    e(f"v_mov_b32 {v(z+2)}, {WS_BYTES}")
    e(f"v_cndmask_b32 {v(z+2)}, {v(z+2)}, 0, vcc")
    return e(f"buffer_store_dwordx2 {v(z,2)}, {v(z+2)}, {s(SWS,4)}, s99 offen {st}")


def frag_reads(i, kk, fs):
    base = (i & 1) * 32768
    f = FRAG + 36 * fs
    r = []
    for uh in range(2):
        r.append(f"ds_read_b128 {a(f+4*uh,4)}, {v(vXR+kk)} offset:{base+2048*uh}")
    for tau in range(7):
        for hh in range(2):
            r.append(f"ds_read_b64_tr_b16 {a(f+8+4*tau+2*hh,2)}, {v(vWR+tau)} offset:{base+8192*kk+1024*hh}")
    return r


def p1_step(e, i, kk, fs, toks, nxt, fill=()):
    f = FRAG + 36 * fs
    first = i == 0 and kk == 0
    q, st = i >> 1, 2 * (i & 1) + kk
    newtoks = []
    nxt = list(nxt)
    fill = list(fill)

    def after():
        if nxt:
            newtoks.append(e(nxt.pop(0)))
        elif fill:
            e(fill.pop(0))
    for tau in range(7):
        e.wait(toks[3 + 2 * tau])
        w = a(f + 8 + 4 * tau, 4)
        d0, d1 = v(ACC + 8 * tau, 4), v(ACC + 8 * tau + 4, 4)
        mfma(e, d1, w, a(f + 4, 4), d0 if first else d1)
        after()
        mfma(e, d0, w, a(f, 4), d0)
        after()
    for uh in range(2):
        for ri in range(2):
            d = v(ACCF + ((q * 2 + uh) * 2 + ri) * 4, 4)
            mfma(e, d, a(f + 4 * uh, 4), a((FI if ri else FR) + 4 * st, 4), "0" if st == 0 else d)
            after()
    for x in fill:
        e(x)
    return newtoks


def toggle(e):
    for r in list(range(vXR, vXR + 2)) + list(range(vWR, vWR + 7)):
        e(f"v_xor_b32 {v(r)}, 0x10000, {v(r)}")


def p1_loop(e, dtok, hooks=None):
    hooks = hooks or {}
    e.wait(dtok[0])
    e("s_barrier")
    toks = [e(x) for x in frag_reads(0, 0, 0)]
    for i in range(8):
        toks = p1_step(e, i, 0, 0, toks, frag_reads(i, 1, 1))
        if i < 7:
            e.wait(dtok[i + 1])
            e("s_barrier")
            if 1 <= i <= 4:
                dtok[i + 3] = p1_dma(e, i + 3)
            if i & 1:
                toggle(e)
            toks = p1_step(e, i, 1, 1, toks, frag_reads(i + 1, 0, 0))
        else:
            p1_step(e, i, 1, 1, toks, [])
        if i in hooks:
            hooks[i](e)


def s1_epilogue(e, st):
    u = sT0
    e(f"s_and_b32 {s(u+6)}, {s(sCT)}, 3")
    e(f"s_cmp_eq_u32 {s(sODD)}, 0")
    e(f"s_cselect_b32 {s(u)}, 1.0, -1.0")
    e(f"s_cselect_b32 {s(u+2)}, 1.0, 0")
    e(f"s_cselect_b32 {s(u+4)}, 0, -1.0")
    e(f"s_lshl_b32 {s(u+6)}, {s(u+6)}, 30")
    e(f"s_and_b32 {s(u+6)}, {s(u+6)}, 0x80000000")
    e(f"s_xor_b32 {s(u+2)}, {s(u+2)}, {s(u+6)}")
    e(f"s_xor_b32 {s(u+4)}, {s(u+4)}, {s(u+6)}")
    for k in (0, 2, 4):
        e(f"s_mov_b32 {s(u+k+1)}, {s(u+k)}")
    Z = lambda q, uh, ri: ACCF + ((q * 2 + uh) * 2 + ri) * 4
    for q in (0, 1):
        for uh in range(2):
            for ri in range(2):
                for h in (0, 2):
                    e(f"v_pk_fma_f32 {v(Z(q,uh,ri)+h,2)}, {v(Z(q+2,uh,ri)+h,2)}, {s(u,2)}, {v(Z(q,uh,ri)+h,2)}")
    for uh in range(2):
        for h in (0, 2):
            er, ei, o_r, oi = (Z(0, uh, 0) + h, Z(0, uh, 1) + h, Z(1, uh, 0) + h, Z(1, uh, 1) + h)
            e(f"v_pk_fma_f32 {v(er,2)}, {v(o_r,2)}, {s(u+2,2)}, {v(er,2)}")
            e(f"v_pk_fma_f32 {v(ei,2)}, {v(oi,2)}, {s(u+2,2)}, {v(ei,2)}")
            e(f"v_pk_fma_f32 {v(er,2)}, {v(oi,2)}, {s(u+4,2)}, {v(er,2)} neg_lo:[1,0,0] neg_hi:[1,0,0]")
            e(f"v_pk_fma_f32 {v(ei,2)}, {v(o_r,2)}, {s(u+4,2)}, {v(ei,2)}")
    XR, XI, XN = ACCF + 32, ACCF + 36, ACCF + 40
    for uh in range(2):
        for h in range(2):
            cvt(e, XR + 2 * uh + h, Z(0, uh, 0) + 2 * h, Z(0, uh, 0) + 2 * h + 1)
            cvt(e, XI + 2 * uh + h, Z(0, uh, 1) + 2 * h, Z(0, uh, 1) + 2 * h + 1)
            cvt(e, XN + 2 * uh + h, Z(0, uh, 0) + 2 * h, Z(0, uh, 0) + 2 * h + 1, neg=True)
    O = ACCF + 48
    for kt in range(2):
        mfma(e, v(O + 8 * kt, 4), v(XR, 4), a(S1C + 4 * kt, 4), "0")
        mfma(e, v(O + 8 * kt + 4, 4), v(XI, 4), a(S1C + 4 * kt, 4), "0")
    for kt in range(2):
        mfma(e, v(O + 8 * kt, 4), v(XI, 4), a(S1S + 4 * kt, 4), v(O + 8 * kt, 4))
        mfma(e, v(O + 8 * kt + 4, 4), v(XN, 4), a(S1S + 4 * kt, 4), v(O + 8 * kt + 4, 4))
    e(f"v_lshlrev_b32 {v(vT)}, 4, {v(vG)}")
    e(f"v_lshl_add_u32 {v(vT)}, {v(vI)}, 16, {v(vT)}")
    e(f"s_lshl_b32 {s(u)}, {s(sV)}, 5")
    e(f"s_add_u32 {s(u)}, {s(u)}, {s(sN2)}")
    e(f"s_lshl_b32 {s(u)}, {s(u)}, 6")
    e(f"s_lshl_b32 {s(u+1)}, {s(sCT)}, 12")
    e(f"s_add_u32 {s(u)}, {s(u)}, {s(u+1)}")
    e(f"s_add_u32 {s(u)}, {s(u)}, {Z1_OFF}")
    e(f"s_add_u32 {s(u+1)}, {s(u)}, {1<<20}")
    for kt in range(2):
        P = ACCF + 4 * kt
        for k in range(4):
            cvt(e, P + k, O + 8 * kt + 2 * k, O + 8 * kt + 2 * k + 1)
        tok = e(f"buffer_store_dwordx4 {v(P,4)}, {v(vT)}, {s(SWS,4)}, {s(u+kt)} offen {st}")
    return tok


C1 = -2.0 * 1.4426950408889634 * 0.7978845608028654
C2 = C1 * 0.044715


def gelu_consts(e):
    e(f"s_mov_b32 {s(sC1)}, {hexf(C2)}")
    e(f"s_mov_b32 {s(sC1+1)}, {hexf(C2)}")
    e(f"v_mov_b32 {v(vT+2)}, {hexf(C1)}")
    e(f"v_mov_b32 {v(vT+3)}, {hexf(C1)}")


def gelu4(e, x, tmp, out):
    for h in (0, 2):
        e(f"v_pk_mul_f32 {v(tmp+h,2)}, {v(x+h,2)}, {v(x+h,2)}")
    for h in (0, 2):
        e(f"v_pk_fma_f32 {v(tmp+h,2)}, {v(tmp+h,2)}, {s(sC1,2)}, {v(vT+2,2)}")
    for h in (0, 2):
        e(f"v_pk_mul_f32 {v(tmp+h,2)}, {v(tmp+h,2)}, {v(x+h,2)}")
    for k in range(4):
        e(f"v_exp_f32 {v(tmp+k)}, {v(tmp+k)}")
    for h in (0, 2):
        e(f"v_pk_add_f32 {v(tmp+h,2)}, {v(tmp+h,2)}, 1.0 op_sel_hi:[1,0]")
    for k in range(4):
        e(f"v_rcp_f32 {v(tmp+k)}, {v(tmp+k)}")
    for h in (0, 2):
        e(f"v_pk_mul_f32 {v(tmp+h,2)}, {v(tmp+h,2)}, {v(x+h,2)}")
    cvt(e, out, tmp, tmp + 1)
    cvt(e, out + 1, tmp + 2, tmp + 3)


def gelu(e, st, hooks=None):
    hooks = hooks or {}
    u = sT0
    gelu_consts(e)
    e(f"s_mul_i32 {s(u)}, {s(sN2)}, 56")
    e(f"s_lshr_b32 {s(u+1)}, {s(sCT)}, 1")
    e(f"s_mul_i32 {s(u+1)}, {s(u+1)}, 7")
    e(f"s_add_u32 {s(u)}, {s(u)}, {s(u+1)}")
    e(f"s_lshl_b32 {s(u)}, {s(u)}, 12")
    e(f"s_lshl_b32 {s(u+1)}, {s(sV)}, 11")
    e(f"s_add_u32 {s(u)}, {s(u)}, {s(u+1)}")
    e(f"s_lshl_b32 {s(u+2)}, {s(sODD)}, 9")
    e(f"s_add_u32 {s(u+2)}, {s(u+2)}, {3*4096}")
    e(f"s_add_u32 {s(u+2)}, {s(u+2)}, {s(u)}")
    e(f"s_lshl_b32 {s(u+1)}, {s(sODD)}, 14")
    e(f"s_add_u32 {s(u)}, {s(u)}, {s(u+1)}")
    e(f"v_lshrrev_b32 {v(vT)}, 5, v0")
    e(f"v_and_b32 {v(vT+1)}, 31, v0")
    e(f"v_lshlrev_b32 {v(vT+1)}, 4, {v(vT+1)}")
    e(f"v_lshl_add_u32 {v(vT)}, {v(vT)}, 10, {v(vT+1)}")
    tmp = vT + 4
    n = 0
    for j in range(3):
        for uh in range(2):
            o = vT + 8 + 4 * (n & 1)
            gelu4(e, ACC + 8 * (2 * j) + 4 * uh, tmp, o)
            gelu4(e, ACC + 8 * (2 * j + 1) + 4 * uh, tmp, o + 2)
            tok = e(f"buffer_store_dwordx4 {v(o,4)}, {v(vL16)}, {s(SWS,4)}, {s(u)} offen offset:{1024*uh} {st}")
            if n in hooks:
                hooks[n](e)
            n += 1
        if j < 2:
            e(f"s_add_u32 {s(u)}, {s(u)}, 4096")
    o = vT + 8
    gelu4(e, ACC + 48, tmp, o)
    gelu4(e, ACC + 52, tmp, o + 2)
    e(f"v_permlane32_swap_b32 {v(o)}, {v(o+2)}")
    e(f"v_permlane32_swap_b32 {v(o+1)}, {v(o+3)}")
    return e(f"buffer_store_dwordx4 {v(o,4)}, {v(vT)}, {s(SWS,4)}, {s(u+2)} offen {st}")


WRr, WIr = 112, 120
vZA = 21


def w_load(e):
    u, t = sT0, vT
    for k in range(16):
        e(f"v_mov_b32 {v(WRr+k)}, 0")
    e(f"s_mul_i32 {s(u)}, {s(sK1)}, 514")
    e(f"s_lshl_b32 {s(u+1)}, {s(sP)}, 1")
    e(f"s_add_u32 {s(u)}, {s(u)}, {s(u+1)}")
    e(f"s_lshl_b32 {s(u+1)}, {s(sWAVE)}, 7")
    e(f"s_add_u32 {s(u)}, {s(u)}, {s(u+1)}")
    e(f"v_mul_u32_u24 {v(t+1)}, {256*514}, {v(vG)}")
    e(f"v_lshl_add_u32 {v(t+1)}, {v(vI)}, 3, {v(t+1)}")
    for k in range(8):
        tt, r = k >> 2, k & 3
        e(f"buffer_load_short_d16_hi {v(WRr+k)}, {v(t+1)}, {s(SWR,4)}, {s(u)} offen")
        tok = e(f"buffer_load_short_d16_hi {v(WIr+k)}, {v(t+1)}, {s(SWI,4)}, {s(u)} offen")
        if k < 7:
            e(f"s_add_u32 {s(u)}, {s(u)}, {64*514*(13 if k == 3 else 1)}")
    return tok


def za_addr(e):
    t = vT
    e(f"v_bfe_u32 {v(t)}, v0, 2, 2")
    e(f"v_lshl_add_u32 {v(t)}, {v(vG)}, 3, {v(t)}")
    e(f"v_and_b32 {v(t+1)}, 3, v0")
    e(f"v_lshlrev_b32 {v(t+1)}, 4, {v(t+1)}")
    e(f"v_lshl_add_u32 {v(t)}, {v(t)}, 6, {v(t+1)}")
    e(f"s_lshl_b32 {s(sT0)}, {s(sWAVE)}, 12")
    e(f"v_add_u32 {v(vZA)}, {s(sT0)}, {v(t)}")


def block_dma(e, soff, ldsbase, ld):
    e(f"s_lshl_b32 {s(sT0+13)}, {s(sWAVE)}, 12")
    e(f"s_add_u32 m0, {s(sT0+13)}, {ldsbase}")
    for j in range(4):
        tok = e(f"buffer_load_dwordx4 {v(vL16)}, {s(SWS,4)}, {s(soff)} offen offset:{1024*j} {ld} lds")
    return tok


def block_read(e, dst, ldsbase):
    for ri in range(2):
        for z in range(2):
            for hh in range(2):
                tok = e(f"ds_read_b64_tr_b16 {v(dst+(ri*2+z)*4+2*hh,2)}, {v(vZA)} "
                        f"offset:{ldsbase+2048*z+256*hh+8*ri}")
    return tok


def neg_frag(e, d, x, n=4):
    for k in range(n):
        e(f"v_xor_b32 {v(d+k)}, 0x80008000, {v(x+k)}")


def p2_zdma(e, ld):
    u = sT0
    e(f"s_and_b32 {s(u)}, {s(sK1)}, 31")
    e(f"s_lshl_b32 {s(u)}, {s(u)}, 4")
    e(f"s_lshl_b32 {s(u+1)}, {s(sWAVE)}, 2")
    e(f"s_add_u32 {s(u)}, {s(u)}, {s(u+1)}")
    e(f"s_add_u32 {s(u)}, {s(u)}, {s(sP)}")
    e(f"s_lshl_b32 {s(u)}, {s(u)}, 12")
    e(f"s_add_u32 {s(u)}, {s(u)}, {Z1_OFF}")
    return block_dma(e, u, 0, ld)


def p2_fwd(e, X, zr, zi, a1, a2):
    for z in range(2):
        for t in range(2):
            d = v(X + 8 * t, 4)
            mfma(e, d, v(GC + 8 * t + 4 * z, 4), v(zr + 4 * z, 4), "0" if z == 0 else d)
            d = v(X + 8 * t + 4, 4)
            mfma(e, d, v(GC + 8 * t + 4 * z, 4), v(zi + 4 * z, 4), "0" if z == 0 else d)
    for z in range(2):
        for t in range(2):
            d = v(X + 8 * t, 4)
            mfma(e, d, v(GS + 8 * t + 4 * z, 4), v(a1 + 4 * z, 4), d)
            d = v(X + 8 * t + 4, 4)
            mfma(e, d, v(GS + 8 * t + 4 * z, 4), v(a2 + 4 * z, 4), d)


NEG0 = "neg_lo:[1,0,0] neg_hi:[1,0,0]"


def p2(e, ztok, wtok, ld, st, hooks=None):
    hooks = hooks or {}
    u = sT0
    ZF, ZN, X, Pq = 56, 72, 80, 96
    join = e.newlabel("p2join")
    special = e.newlabel("p2special")
    e.wait(ztok)
    lk = block_read(e, ZF, 0)
    e.wait(lk)
    neg_frag(e, ZN, ZF, 8)
    p2_fwd(e, X, ZF, ZF + 8, ZF + 8, ZN)
    if "fwd" in hooks:
        hooks["fwd"](e)
    e.wait(wtok)
    e(f"s_or_b32 {s(u)}, {s(sP)}, {s(sWAVE)}")
    e(f"s_cmp_eq_u32 {s(u)}, 0")
    e(f"s_cbranch_scc1 {special}")
    for t in range(2):
        for h in (0, 2):
            xr, xi, wr, wi = X + 8 * t + h, X + 8 * t + 4 + h, WRr + 4 * t + h, WIr + 4 * t + h
            pr, pi = Pq + 8 * t + h, Pq + 8 * t + 4 + h
            e(f"v_pk_mul_f32 {v(pr,2)}, {v(xr,2)}, {v(wr,2)}")
            e(f"v_pk_mul_f32 {v(pi,2)}, {v(xi,2)}, {v(wr,2)}")
            e(f"v_pk_fma_f32 {v(pr,2)}, {v(xi,2)}, {v(wi,2)}, {v(pr,2)} {NEG0}")
            e(f"v_pk_fma_f32 {v(pi,2)}, {v(xr,2)}, {v(wi,2)}, {v(pi,2)}")
    e.label(join)
    PR, PI, PN, Y = 56, 60, 64, 80
    for t in range(2):
        for h in range(2):
            cvt(e, PR + 2 * t + h, Pq + 8 * t + 2 * h, Pq + 8 * t + 2 * h + 1)
            cvt(e, PI + 2 * t + h, Pq + 8 * t + 4 + 2 * h, Pq + 8 * t + 4 + 2 * h + 1)
            cvt(e, PN + 2 * t + h, Pq + 8 * t + 4 + 2 * h, Pq + 8 * t + 4 + 2 * h + 1, neg=True)
    for nt in range(2):
        mfma(e, v(Y + 8 * nt, 4), v(PR, 4), v(IC + 4 * nt, 4), "0")
        mfma(e, v(Y + 8 * nt + 4, 4), v(PI, 4), v(IC + 4 * nt, 4), "0")
    for nt in range(2):
        mfma(e, v(Y + 8 * nt, 4), v(PN, 4), v(IS + 4 * nt, 4), v(Y + 8 * nt, 4))
        mfma(e, v(Y + 8 * nt + 4, 4), v(PR, 4), v(IS + 4 * nt, 4), v(Y + 8 * nt + 4, 4))
    e(f"s_lshr_b32 {s(u)}, {s(sWAVE)}, 1")
    e(f"s_lshl_b32 {s(u)}, {s(u)}, 10")
    e(f"s_and_b32 {s(u+1)}, {s(sWAVE)}, 1")
    e(f"s_lshl_b32 {s(u+1)}, {s(u+1)}, 3")
    e(f"s_add_u32 {s(u)}, {s(u)}, {s(u+1)}")
    e(f"s_add_u32 {s(u)}, {s(u)}, {LDS_YX}")
    e(f"v_add_u32 {v(vT)}, {s(u)}, {v(vL16)}")
    e(f"v_add_u32 {v(vT+1)}, {LDS_YX}, {v(vL16)}")
    for nt in range(2):
        for ri in range(2):
            o = vT + 2 + 2 * (2 * nt + ri)
            cvt(e, o, Y + 8 * nt + 4 * ri, Y + 8 * nt + 4 * ri + 1)
            cvt(e, o + 1, Y + 8 * nt + 4 * ri + 2, Y + 8 * nt + 4 * ri + 3)
            lk = e(f"ds_write_b64 {v(vT)}, {v(o,2)} offset:{(ri*2+nt)*2048}")
    e.wait(lk)
    e("s_barrier")
    YF, YN, T = 56, 88, 112
    toks = [e(f"ds_read_b128 {v(YF+4*k,4)}, {v(vT+1)} offset:{1024*k}") for k in range(8)]
    e(f"v_lshlrev_b32 {v(vT)}, 4, {v(vG)}")
    e(f"v_lshl_add_u32 {v(vT)}, {v(vI)}, 17, {v(vT)}")
    e(f"s_lshl_b32 {s(u)}, {s(sP)}, 15")
    e(f"s_lshl_b32 {s(u+1)}, {s(sWAVE)}, 13")
    e(f"s_add_u32 {s(u)}, {s(u)}, {s(u+1)}")
    e(f"s_lshl_b32 {s(u+1)}, {s(sK1)}, 6")
    e(f"s_add_u32 {s(u)}, {s(u)}, {s(u+1)}")
    e(f"s_add_u32 {s(u)}, {s(u)}, {T_OFF}")
    e(f"s_add_u32 {s(u+1)}, {s(u)}, {1<<21}")
    e(f"s_add_u32 {s(u+2)}, {s(u)}, 4096")
    e(f"s_add_u32 {s(u+3)}, {s(u+1)}, 4096")
    e.wait(toks[-1])
    neg_frag(e, YN, YF + 16, 16)
    yr = lambda nt, z: v(YF + 8 * nt + 4 * z, 4)
    yi = lambda nt, z: v(YF + 16 + 8 * nt + 4 * z, 4)
    yn = lambda nt, z: v(YN + 8 * nt + 4 * z, 4)
    for et in range(2):
        for z in range(2):
            for nt in range(2):
                d = v(T + 16 * et + 8 * nt, 4)
                mfma(e, d, v(DC + 8 * et + 4 * z, 4), yr(nt, z), "0" if z == 0 else d)
                d = v(T + 16 * et + 8 * nt + 4, 4)
                mfma(e, d, v(DC + 8 * et + 4 * z, 4), yi(nt, z), "0" if z == 0 else d)
        for z in range(2):
            for nt in range(2):
                d = v(T + 16 * et + 8 * nt, 4)
                mfma(e, d, v(DS + 8 * et + 4 * z, 4), yn(nt, z), d)
                d = v(T + 16 * et + 8 * nt + 4, 4)
                mfma(e, d, v(DS + 8 * et + 4 * z, 4), yr(nt, z), d)
    for et in range(2):
        for nt in range(2):
            o = vT + 2 + 4 * (2 * et + nt)
            b = T + 16 * et + 8 * nt
            for k in range(4):
                cvt(e, o + k, b + 2 * k, b + 2 * k + 1)
            tok = e(f"buffer_store_dwordx4 {v(o,4)}, {v(vT)}, {s(SWS,4)}, {s(u+2*et+nt)} offen {st}")

    def tail(e2):
        e2.label(special)
        E = 128
        A0r, A0i, Br, Bi, Cr, Ci = E, E + 8, E + 16, E + 24, E + 32, E + 40
        for k in range(48):
            e2(f"v_mov_b32 {v(E+k)}, 0")
        e2(f"s_and_b32 {s(u)}, {s(sK1)}, 31")
        e2(f"s_sub_u32 {s(u)}, 32, {s(u)}")
        e2(f"s_and_b32 {s(u)}, {s(u)}, 31")
        e2(f"s_lshl_b32 {s(u)}, {s(u)}, 16")
        e2(f"s_add_u32 {s(u)}, {s(u)}, {Z1_OFF}")
        zt = block_dma(e2, u, 32768, ld)
        e2(f"v_lshl_add_u32 {v(vT)}, {v(vG)}, 8, {s(sK1)}")
        e2(f"s_movk_i32 {s(u+1)}, 514")
        for k in range(8):
            tt, r = k >> 2, k & 3
            e2(f"v_add_u32 {v(vT+1)}, {64*(16*tt+r)}, {v(vT)}")
            e2(f"v_sub_u32 {v(vT+2)}, 2048, {v(vT+1)}")
            e2(f"v_and_b32 {v(vT+2)}, 2047, {v(vT+2)}")
            e2(f"v_mul_u32_u24 {v(vT+1)}, 514, {v(vT+1)}")
            e2(f"v_mul_u32_u24 {v(vT+2)}, 514, {v(vT+2)}")
            e2(f"buffer_load_short_d16_hi {v(A0r+k)}, {v(vT+2)}, {s(SWR,4)}, 0 offen")
            e2(f"buffer_load_short_d16_hi {v(A0i+k)}, {v(vT+2)}, {s(SWI,4)}, 0 offen")
            e2(f"buffer_load_short_d16_hi {v(Br+k)}, {v(vT+1)}, {s(SWR,4)}, 0 offen offset:512")
            e2(f"buffer_load_short_d16_hi {v(Bi+k)}, {v(vT+1)}, {s(SWI,4)}, 0 offen offset:512")
            e2(f"buffer_load_short_d16_hi {v(Cr+k)}, {v(vT+2)}, {s(SWR,4)}, 0 offen offset:512")
            e2(f"buffer_load_short_d16_hi {v(Ci+k)}, {v(vT+2)}, {s(SWI,4)}, 0 offen offset:512")
        e2.wait(zt)
        lk2 = block_read(e2, ZF, 32768)
        e2.wait(lk2)
        neg_frag(e2, ZN, ZF, 8)
        neg_frag(e2, ZF + 8, ZF + 8, 8)
        XC = vT + 2
        p2_fwd(e2, XC, ZF, ZF + 8, ZF + 8, ZN)
        e2.wait_all_vm()
        e2(f"v_cmp_eq_u32 vcc, 0, {v(vI)}")
        for k in range(8):
            e2(f"v_add_f32 {v(A0r+k)}, {v(WRr+k)}, {v(A0r+k)}")
            e2(f"v_sub_f32 {v(A0i+k)}, {v(WIr+k)}, {v(A0i+k)}")
            e2(f"v_add_f32 {v(Br+k)}, {v(Br+k)}, {v(Cr+k)}")
            e2(f"v_sub_f32 {v(Bi+k)}, {v(Bi+k)}, {v(Ci+k)}")
            e2(f"v_add_f32 {v(Cr+k)}, {v(A0r+k)}, {v(Br+k)}")
            e2(f"v_add_f32 {v(Ci+k)}, {v(A0i+k)}, {v(Bi+k)}")
            e2(f"v_sub_f32 {v(Br+k)}, {v(A0r+k)}, {v(Br+k)}")
            e2(f"v_sub_f32 {v(Bi+k)}, {v(A0i+k)}, {v(Bi+k)}")
            for r in (Cr, Ci, Br, Bi):
                e2(f"v_mul_f32 {v(r+k)}, 0x3e800000, {v(r+k)}")
            e2(f"v_cndmask_b32 {v(WRr+k)}, {v(WRr+k)}, {v(Cr+k)}, vcc")
            e2(f"v_cndmask_b32 {v(WIr+k)}, {v(WIr+k)}, {v(Ci+k)}, vcc")
            e2(f"v_cndmask_b32 {v(Br+k)}, 0, {v(Br+k)}, vcc")
            e2(f"v_cndmask_b32 {v(Bi+k)}, 0, {v(Bi+k)}, vcc")
        for t in range(2):
            for h in (0, 2):
                xr, xi, wr, wi = X + 8 * t + h, X + 8 * t + 4 + h, WRr + 4 * t + h, WIr + 4 * t + h
                cr, ci, br, bi = XC + 8 * t + h, XC + 8 * t + 4 + h, Br + 4 * t + h, Bi + 4 * t + h
                pr, pi = Pq + 8 * t + h, Pq + 8 * t + 4 + h
                e2(f"v_pk_mul_f32 {v(pr,2)}, {v(xr,2)}, {v(wr,2)}")
                e2(f"v_pk_mul_f32 {v(pi,2)}, {v(xi,2)}, {v(wr,2)}")
                e2(f"v_pk_fma_f32 {v(pr,2)}, {v(xi,2)}, {v(wi,2)}, {v(pr,2)} {NEG0}")
                e2(f"v_pk_fma_f32 {v(pi,2)}, {v(xr,2)}, {v(wi,2)}, {v(pi,2)}")
                e2(f"v_pk_fma_f32 {v(pr,2)}, {v(cr,2)}, {v(br,2)}, {v(pr,2)}")
                e2(f"v_pk_fma_f32 {v(pi,2)}, {v(ci,2)}, {v(br,2)}, {v(pi,2)}")
                e2(f"v_pk_fma_f32 {v(pr,2)}, {v(ci,2)}, {v(bi,2)}, {v(pr,2)} {NEG0}")
                e2(f"v_pk_fma_f32 {v(pi,2)}, {v(cr,2)}, {v(bi,2)}, {v(pi,2)}")
        e2(f"s_branch {join}")
    return tok, tail


ACC2 = 56
HR = 120
HDEPTH = 5
vW2A, vHA = 4, 5
TF, TN, YY = 200, 216, 22
PRE, vOMG, vGV = 228, 244, 254


def g2_addr(e):
    u = sT0
    e(f"s_mul_i32 {s(u)}, {s(sC)}, 56")
    e(f"s_mul_i32 {s(u+1)}, {s(sWAVE)}, 14")
    e(f"s_add_u32 {s(u)}, {s(u)}, {s(u+1)}")
    e(f"s_lshl_b32 {s(u)}, {s(u)}, 12")
    e(f"s_add_u32 {s(u)}, {s(u)}, {W2R_OFF}")
    e(f"v_add_u32 {v(vW2A)}, {s(u)}, {v(vL16)}")
    e(f"s_mul_i32 {s(u)}, {s(sGN2)}, 56")
    e(f"s_add_u32 {s(u)}, {s(u)}, {s(u+1)}")
    e(f"s_lshl_b32 {s(u)}, {s(u)}, 12")
    for tl in range(4):
        e(f"s_xor_b32 {s(u+1)}, {s(sWAVE)}, {tl}")
        e(f"s_lshl_b32 {s(u+1)}, {s(u+1)}, 10")
        e(f"s_add_u32 {s(u+1)}, {s(u+1)}, {s(u)}")
        e(f"v_add_u32 {v(vHA+tl)}, {s(u+1)}, {v(vL16)}")


def w2_load(e, i, ld):
    for ap in range(4):
        tok = e(f"buffer_load_dwordx4 {a(16*i+4*ap,4)}, {v(vW2A)}, {s(SWS,4)}, {s(sK+i)} offen offset:{1024*ap} {ld}")
    return tok


def h_load(e, i, tl, ld):
    return e(f"buffer_load_dwordx4 {v(HR+16*(i%HDEPTH)+4*tl,4)}, {v(vHA+tl)}, {s(SWS,4)}, {s(sK+i)} offen {ld}")


def p3_dma(e, ld):
    u = sT0
    e(f"s_lshl_b32 {s(u)}, {s(sGN2)}, 2")
    e(f"s_add_u32 {s(u)}, {s(u)}, {s(sWAVE)}")
    e(f"s_lshl_b32 {s(u)}, {s(u)}, 3")
    e(f"s_add_u32 {s(u)}, {s(u)}, {s(sC)}")
    e(f"s_lshl_b32 {s(u)}, {s(u)}, 12")
    e(f"s_add_u32 {s(u)}, {s(u)}, {T_OFF}")
    return block_dma(e, u, 32768, ld)


def p3_a(e, ttok):
    e.wait(ttok)
    lk = block_read(e, TF, 32768)
    e.wait(lk)
    tr0, tr1, ti0, ti1 = TF, TF + 4, TF + 8, TF + 12
    rn1, in0, in1 = TN, TN + 4, TN + 8
    neg_frag(e, rn1, tr1)
    neg_frag(e, in0, ti0, 8)
    terms = {
        (0, 0): [(tr0, 0), (tr1, 0), (in0, 1), (in1, 1)], (1, 0): [(tr0, 0), (rn1, 0), (in0, 1), (ti1, 1)],
        (0, 1): [(ti0, 0), (ti1, 0), (tr0, 1), (tr1, 1)], (1, 1): [(ti0, 0), (in1, 0), (tr0, 1), (rn1, 1)]}
    for k in range(4):
        for t in range(4):
            for ri in range(2):
                d = v(YY + 8 * t + 4 * ri, 4)
                x, cs = terms[(t >> 1, ri)][k]
                mfma(e, d, v(x, 4), a(P3C + 8 * t + 4 * cs, 4), "0" if k == 0 else d)
    e(f"s_lshl_b32 {s(sT0)}, {s(sWAVE)}, 13")
    e(f"s_add_u32 {s(sT0)}, {s(sT0)}, {LDS_YE}")
    e(f"v_add_u32 {v(9)}, {s(sT0)}, {v(vL16)}")
    for k in range(8):
        lk = e(f"ds_write_b128 {v(9)}, {v(YY+4*k,4)} offset:{1024*k}")
    return lk


def p3_misc_load(e, ld):
    u = sT0
    e(f"s_lshl_b32 {s(u)}, {s(sGN2)}, 2")
    e(f"s_add_u32 {s(u)}, {s(u)}, {s(sWAVE)}")
    e(f"s_lshl_b32 {s(u)}, {s(u)}, 6")
    e(f"s_add_u32 {s(u)}, {s(u)}, {G_OFF}")
    e(f"v_lshlrev_b32 {v(10)}, 2, {v(vI)}")
    return e(f"buffer_load_dword {v(vGV)}, {v(10)}, {s(SWS,4)}, {s(u)} offen {ld}")


def b2_load(e):
    u = sT0
    e(f"s_lshl_b32 {s(u)}, {s(sC)}, 5")
    e(f"v_lshlrev_b32 {v(10)}, 3, {v(vG)}")
    for ap in range(4):
        tok = e(f"buffer_load_dwordx2 {v(246+2*ap,2)}, {v(10)}, {s(SB2,4)}, {s(u)} offen offset:{256*ap}")
    return tok


def p3_b(e, gtok, btok):
    e(f"s_lshl_b32 {s(sT0)}, {s(sWAVE)}, 11")
    e(f"s_add_u32 {s(sT0)}, {s(sT0)}, {LDS_YE}")
    e(f"v_add_u32 {v(9)}, {s(sT0)}, {v(vL16)}")
    R0, R1, I1, R2, R3, I3 = (YY + 4 * k for k in range(6))
    for d, p, ri in ((R0, 0, 0), (R2, 2, 0), (R1, 1, 0), (R3, 3, 0), (I1, 1, 1), (I3, 3, 1)):
        lk = e(f"ds_read_b128 {v(d,4)}, {v(9)} offset:{8192*p+1024*ri}")
    e.wait(gtok, btok)
    e(f"v_sub_f32 {v(vOMG)}, 1.0, {v(vGV)}")
    cvt(e, vOMG, vOMG, vOMG)
    e(f"v_and_b32 {v(vOMG)}, 0xffff0000, {v(vOMG)}")
    e(f"v_mov_b32 {v(vOMG+1)}, {v(vOMG)}")
    e(f"v_mul_f32 {v(54)}, {hexf(2.0**-19)}, {v(vGV)}")
    e(f"v_mov_b32 {v(55)}, {v(54)}")
    for ap in range(4):
        d, x = PRE + 4 * ap, 246 + 2 * ap
        e(f"v_lshlrev_b32 {v(d)}, 16, {v(x)}")
        e(f"v_and_b32 {v(d+1)}, 0xffff0000, {v(x)}")
        e(f"v_lshlrev_b32 {v(d+2)}, 16, {v(x+1)}")
        e(f"v_and_b32 {v(d+3)}, 0xffff0000, {v(x+1)}")
    for k in range(0, 16, 2):
        e(f"v_pk_mul_f32 {v(PRE+k,2)}, {v(PRE+k,2)}, {v(vOMG,2)}")
    e.wait(lk)
    U0, U2 = YY + 24, YY + 28
    NEG1 = "neg_lo:[0,1] neg_hi:[0,1]"
    for h in (0, 2):
        e(f"v_pk_add_f32 {v(U0+h,2)}, {v(R0+h,2)}, {v(R2+h,2)}")
        e(f"v_pk_add_f32 {v(R0+h,2)}, {v(R0+h,2)}, {v(R2+h,2)} {NEG1}")
        e(f"v_pk_add_f32 {v(U2+h,2)}, {v(R1+h,2)}, {v(R3+h,2)}")
        e(f"v_pk_add_f32 {v(I3+h,2)}, {v(I3+h,2)}, {v(I1+h,2)} {NEG1}")
        e(f"v_pk_add_f32 {v(R1+h,2)}, {v(U0+h,2)}, {v(U2+h,2)}")
        e(f"v_pk_add_f32 {v(R2+h,2)}, {v(U0+h,2)}, {v(U2+h,2)} {NEG1}")
        e(f"v_pk_add_f32 {v(R3+h,2)}, {v(R0+h,2)}, {v(I3+h,2)}")
        e(f"v_pk_add_f32 {v(I1+h,2)}, {v(R0+h,2)}, {v(I3+h,2)} {NEG1}")
        for ap, x in ((0, R1), (1, R3), (2, R2), (3, I1)):
            e(f"v_pk_fma_f32 {v(PRE+4*ap+h,2)}, {v(x+h,2)}, {v(54,2)}, {v(PRE+4*ap+h,2)}")


def g2_main(e, wtoks, ld, hooks=None):
    hooks = hooks or {}
    htok = {}
    for i in range(HDEPTH):
        for tl in range(4):
            htok[(i, tl)] = h_load(e, i, tl, ld)
    if "start" in hooks:
        hooks["start"](e)
    for i in range(14):
        e.wait(wtoks[i])
        for tl in range(4):
            e.wait(htok[(i, tl)])
            for ap in range(4):
                d = v(ACC2 + 16 * ap + 4 * tl, 4)
                mfma(e, d, a(16 * i + 4 * ap, 4), v(HR + 16 * (i % HDEPTH) + 4 * tl, 4), "0" if i == 0 else d)
            if i + HDEPTH < 14:
                htok[(i + HDEPTH, tl)] = h_load(e, i + HDEPTH, tl, ld)
        if i in hooks:
            hooks[i](e)


def g2_final(e):
    u = sT0
    for tl in range(1, 4):
        e(f"s_xor_b32 {s(u)}, {s(sWAVE)}, {tl}")
        e(f"s_mul_i32 {s(u)}, {s(u)}, 12288")
        e(f"s_add_u32 {s(u)}, {s(u)}, {LDS_RS+4096*(tl-1)}")
        e(f"v_add_u32 {v(9+tl)}, {s(u)}, {v(vL16)}")
    e(f"s_mul_i32 {s(u)}, {s(sWAVE)}, 12288")
    e(f"s_add_u32 {s(u)}, {s(u)}, {LDS_RS}")
    e(f"v_add_u32 {v(9)}, {s(u)}, {v(vL16)}")
    for tl in range(1, 4):
        for ap in range(4):
            lk = e(f"ds_write_b128 {v(9+tl)}, {v(ACC2+16*ap+4*tl,4)} offset:{1024*ap}")
    e(f"s_and_b32 {s(u)}, {s(sWAVE)}, 1")
    e(f"s_lshl_b32 {s(u)}, {s(u)}, 5")
    e(f"s_lshr_b32 {s(u+1)}, {s(sWAVE)}, 1")
    e(f"s_add_u32 {s(u)}, {s(u)}, {s(u+1)}")
    e(f"s_lshl_b32 {s(u)}, {s(u)}, 5")
    e(f"s_add_u32 {s(u)}, {s(u)}, {s(sGN2)}")
    e(f"s_lshl_b32 {s(u)}, {s(u)}, 10")
    e(f"s_lshl_b32 {s(u+1)}, {s(sC)}, 5")
    e(f"s_add_u32 {s(u)}, {s(u)}, {s(u+1)}")
    e(f"v_and_b32 {v(13)}, 1, {v(vG)}")
    e(f"v_lshlrev_b32 {v(13)}, 8, {v(13)}")
    e(f"v_lshl_add_u32 {v(13)}, {v(vI)}, 16, {v(13)}")
    e(f"v_lshrrev_b32 {v(14)}, 1, {v(vG)}")
    e(f"v_lshl_add_u32 {v(13)}, {v(14)}, 4, {v(13)}")
    e.wait(lk)
    e("s_barrier")
    toks = [e(f"ds_read_b128 {v(HR+4*k,4)}, {v(9)} offset:{1024*k}") for k in range(12)]
    for sl in range(3):
        for ap in range(4):
            e.wait(toks[4 * sl + ap])
            for h in (0, 2):
                d = ACC2 + 16 * ap + h
                e(f"v_pk_add_f32 {v(d,2)}, {v(d,2)}, {v(HR+16*sl+4*ap+h,2)}")
    O = 24
    for ap in range(4):
        for h in (0, 2):
            d = ACC2 + 16 * ap + h
            e(f"v_pk_fma_f32 {v(d,2)}, {v(d,2)}, {v(vOMG,2)}, {v(PRE+4*ap+h,2)}")
        cvt(e, O + 2 * ap, ACC2 + 16 * ap, ACC2 + 16 * ap + 1)
        cvt(e, O + 2 * ap + 1, ACC2 + 16 * ap + 2, ACC2 + 16 * ap + 3)
    for pr in range(2):
        e(f"v_permlane16_swap_b32 {v(O+4*pr)}, {v(O+4*pr+2)}")
        e(f"v_permlane16_swap_b32 {v(O+4*pr+1)}, {v(O+4*pr+3)}")
        e(f"buffer_store_dwordx4 {v(O+4*pr,4)}, {v(13)}, {s(SOUT,4)}, {s(u)} offen offset:{512*pr}")


HEAD = open("cdna_kernels/" + NAME + ".s.ref").read().split("; Override launch")[0]


def kernel_open(e, name):
    e.raw(f".globl {name}")
    e.raw(".p2align 8")
    e.raw(f".type {name},@function")
    e.raw(f"{name}:")
    e.reset_hist()


def descriptor(e, name):
    e.raw(".p2align 6")
    e.raw(f".amdhsa_kernel {name}")
    e.raw("  .amdhsa_next_free_vgpr 512")
    e.raw("  .amdhsa_next_free_sgpr 102")
    e.raw("  .amdhsa_accum_offset 256")
    e.raw("  .amdhsa_group_segment_fixed_size 0")
    e.raw("  .amdhsa_kernarg_size 96")
    e.raw("  .amdhsa_user_sgpr_count 2")
    e.raw("  .amdhsa_user_sgpr_kernarg_segment_ptr 1")
    e.raw("  .amdhsa_system_sgpr_workgroup_id_x 1")
    e.raw("  .amdhsa_float_denorm_mode_32 3")
    e.raw(".end_amdhsa_kernel")


def split_version():
    e = Em()
    e.raw(HEAD.rstrip())
    names = ["p1_kernel", "p2_kernel", "p3_kernel"]
    for n in names:
        e.raw(f"; @launch kernel={n} grid=(256,1,1) block=(256,1,1) lds={LDS_BYTES}")
    e.raw('.amdgcn_target "amdgcn-amd-amdhsa--gfx950"')
    e.raw(".text")
    st, ld = "", ""
    kernel_open(e, names[0])
    setup_common(e, "L_end1")
    ids_p1(e)
    p1_addr(e)
    e("s_waitcnt lgkmcnt(0)")
    dtok = {i: p1_dma(e, i) for i in range(4)}
    btok = bias_load(e)
    w2tok = w2r_load(e)
    gtok = gate_load(e)
    p1_raddr(e)
    const_F(e)
    const_S1(e)
    e.wait(btok)
    bias_unpack(e)
    w2r_store(e, w2tok, st)
    gate_finish(e, gtok, st)
    p1_loop(e, dtok)
    s1_epilogue(e, st)
    gelu(e, st)
    e.label("L_end1")
    e("s_endpgm")
    kernel_open(e, names[1])
    setup_common(e, "L_end2")
    ids_p2(e)
    e("s_waitcnt lgkmcnt(0)")
    ztok = p2_zdma(e, ld)
    wtok = w_load(e)
    za_addr(e)
    const_G(e)
    const_I(e)
    const_D(e)
    _, tail = p2(e, ztok, wtok, ld, st)
    e.label("L_end2")
    e("s_endpgm")
    tail(e)
    kernel_open(e, names[2])
    setup_common(e, "L_end3")
    ids_g2(e)
    g2_addr(e)
    e("s_waitcnt lgkmcnt(0)")
    ttok = p3_dma(e, ld)
    gtok = p3_misc_load(e, ld)
    btok = b2_load(e)
    wtoks = [w2_load(e, i, ld) for i in range(14)]
    za_addr(e)
    const_P3(e)

    def hook_a(e):
        lk = p3_a(e, ttok)
        e.wait(lk)
        e("s_barrier")
        p3_b(e, gtok, btok)
    g2_main(e, wtoks, ld, {"start": hook_a})
    g2_final(e)
    e.label("L_end3")
    e("s_endpgm")
    e.raw('.section .rodata,"a"')
    for n in names:
        descriptor(e, n)
    return e


if __name__ == "__main__":
    e = split_version()
    open("split.s", "w").write(e.text())
    print("nops", e.nops, "lines", len(e.out))
```
